```python
import torch

def _softmax(x, axis=-1):
    return torch.softmax(x, dim=axis)
def _gelu(x):
    return torch.nn.functional.gelu(x, approximate="tanh")
def _silu(x):
    return torch.nn.functional.silu(x)
def _sigmoid(x):
    return torch.sigmoid(x)
def _layernorm(x, axis=-1, eps=1e-5):
    m = x.mean(dim=axis, keepdim=True)
    v = x.var(dim=axis, keepdim=True, unbiased=False)
    return (x - m) / torch.sqrt(v + eps)
def _scatter_add(tgt, idx, src, axis=0):
    return tgt.clone().index_add_(axis, idx, src)
def _segment_sum(src, seg, n):
    out = torch.zeros((n,) + src.shape[1:], dtype=src.dtype)
    return out.index_add_(0, seg, src)
def _pad(x, pw):
    flat = tuple(v for pair in reversed(pw) for v in pair)
    return torch.nn.functional.pad(x, flat)

kernel_name = 'gated_mix__ssm_conv_s5__glu_gated_bilinear__prompt'

def setup_inputs():

    _w = (lambda a: (lambda t: t.to(torch.bfloat16) if t.is_floating_point() else t)(torch.as_tensor(a)))
    def _A_setup():
        B, S, D = 1, 2048, 448
        P = D
        Lambda_re = -0.5 * (lambda _x: torch.exp(torch.as_tensor(_x)))((lambda *s: torch.randn(*s, dtype=torch.bfloat16) * 0.2)(P))
        Lambda_im = (lambda *s: torch.randn(*s, dtype=torch.bfloat16) * 0.4)(P) * 1.0
        B_re = (lambda *s: torch.randn(*s, dtype=torch.bfloat16) * 0.2)(P, D) * (D ** -0.5)
        B_im = (lambda *s: torch.randn(*s, dtype=torch.bfloat16) * 0.2)(P, D) * (D ** -0.5)
        C_re = (lambda *s: torch.randn(*s, dtype=torch.bfloat16) * 0.2)(D, P) * (P ** -0.5)
        C_im = (lambda *s: torch.randn(*s, dtype=torch.bfloat16) * 0.2)(D, P) * (P ** -0.5)
        log_dt = (lambda *s: torch.randn(*s, dtype=torch.bfloat16) * 0.2)(P) * 0.3 - 2.0
        Dskip = (lambda *s: torch.randn(*s, dtype=torch.bfloat16) * 0.05)(D)
        return {
            "x": _w((lambda *s: torch.randn(*s, dtype=torch.bfloat16) * 0.05)(B, S, D)),
            "Lambda_re": _w(Lambda_re),
            "Lambda_im": _w(Lambda_im),
            "B_re": _w(B_re),
            "B_im": _w(B_im),
            "C_re": _w(C_re),
            "C_im": _w(C_im),
            "log_dt": _w(log_dt),
            "Dskip": _w(Dskip),
        }
    _A_in = _A_setup()

    def _B_setup():
        B, S, D, F = 1, 2048, 448, 1792
        return {
            "x": _w((lambda *s: torch.randn(*s, dtype=torch.bfloat16) * 0.05)(B, S, D)),
            "w_gate": _w((lambda *s: torch.randn(*s, dtype=torch.bfloat16) * 0.8)(D, F) * (D ** -0.5)),
            "w_up": _w((lambda *s: torch.randn(*s, dtype=torch.bfloat16) * 0.8)(D, F) * (D ** -0.5)),
            "w_down": _w((lambda *s: torch.randn(*s, dtype=torch.bfloat16) * 0.8)(F, D) * (F ** -0.5)),
        }
    _B_in = _B_setup()

    return {
        "A_x": _A_in["x"],
        "A_Lambda_re": _A_in["Lambda_re"],
        "A_Lambda_im": _A_in["Lambda_im"],
        "A_B_re": _A_in["B_re"],
        "A_B_im": _A_in["B_im"],
        "A_C_re": _A_in["C_re"],
        "A_C_im": _A_in["C_im"],
        "A_log_dt": _A_in["log_dt"],
        "A_Dskip": _A_in["Dskip"],
        "B_x": _B_in["x"],
        "B_w_gate": _B_in["w_gate"],
        "B_w_up": _B_in["w_up"],
        "B_w_down": _B_in["w_down"],
        "gate_w": _w((lambda *s: torch.randn(*s, dtype=torch.bfloat16) * 0.05)(448) * 16.0),
    }

def reference(A_x, A_Lambda_re, A_Lambda_im, A_B_re, A_B_im, A_C_re, A_C_im, A_log_dt, A_Dskip, B_x, B_w_gate, B_w_up, B_w_down, gate_w):
    def _A_ref(x, Lambda_re, Lambda_im, B_re, B_im, C_re, C_im, log_dt, Dskip):
        Bsz, L, H = x.shape
        Lam = Lambda_re + 1j * Lambda_im
        Bmat = B_re + 1j * B_im
        Cmat = C_re + 1j * C_im
        dt = torch.exp(log_dt)
        Lam_bar = torch.exp(dt * Lam)
        B_bar = ((Lam_bar - 1.0) / Lam)[:, None] * Bmat
        Bu = torch.einsum("bld,pd->blp", x + 0j, B_bar)
        h = torch.zeros_like(Bu[:, 0, :])
        hs = []
        for t in range(L):
            h = Lam_bar[None, :] * h + Bu[:, t, :]
            hs.append(h)
        hseq = torch.stack(hs, 1)
        y = 2.0 * torch.einsum("blp,dp->bld", hseq, Cmat).real + x * Dskip[None, None, :]
        return y

    def _B_ref(x, w_gate, w_up, w_down):
        g = torch.einsum("bsd,df->bsf", x, w_gate)
        u = torch.einsum("bsd,df->bsf", x, w_up)
        h = g * u
        return torch.einsum("bsf,fd->bsd", h, w_down)

    x = A_x
    g = _sigmoid((x * gate_w).sum(-1, keepdims=True))
    a = _A_ref(x, A_Lambda_re, A_Lambda_im, A_B_re, A_B_im, A_C_re, A_C_im, A_log_dt, A_Dskip)
    b = _B_ref(x, B_w_gate, B_w_up, B_w_down)
    return g * a + (1 - g) * b
```

```python
import re

REG = re.compile(r'\b([vas])\[(\d+):(\d+)\]|\b([vas])(\d+)\b|\b(vcc|exec|m0)\b')
def regs_of(op):
    out = set()
    for m in REG.finditer(op):
        if m.group(1):
            for r in range(int(m.group(2)), int(m.group(3)) + 1): out.add(m.group(1) + str(r))
        elif m.group(4): out.add(m.group(4) + m.group(5))
        else: out.add(m.group(6))
    return out

TRANS = ('v_exp_f32', 'v_log_f32', 'v_rcp_f32', 'v_rsq_f32', 'v_sqrt_f32', 'v_sin_f32', 'v_cos_f32')

class Ins:
    def __init__(self, text):
        self.text = text
        t = text.split(';')[0].strip()
        self.label = t.endswith(':')
        self.mn = t.split()[0] if t else ''
        rest = t[len(self.mn):].strip()
        ops = []; d = 0; cur = ''
        for ch in rest:
            if ch == '[': d += 1
            if ch == ']': d -= 1
            if ch == ',' and d == 0: ops.append(cur.strip()); cur = ''
            else: cur += ch
        if cur.strip(): ops.append(cur.strip())
        if ops:
            last = ops[-1]
            mm = re.match(r'^(-?\|?[\w.]+(?:\[\d+:\d+\])?\|?)(.*)$', last)
            if mm and not self.mn.startswith('s_waitcnt'):
                ops[-1] = mm.group(1); self.mods = mm.group(2)
            else: self.mods = ''
        else: self.mods = ''
        self.ops = ops
        mn = self.mn
        self.mfma = mn.startswith('v_mfma')
        self.valu = mn.startswith('v_') and not self.mfma
        self.vmem = mn.startswith(('buffer_', 'global_'))
        self.ds = mn.startswith('ds_')
        self.salu = mn.startswith('s_')
        self.dpp = '_dpp' in mn
        self.trans = mn.startswith(TRANS)
        self.dot = mn.startswith('v_dot')
        self.perml = mn.startswith('v_permlane')
        self.ldsdma = self.vmem and ' lds' in (' ' + self.mods)
        w = set(); r = set()
        R = [regs_of(o) for o in ops]
        if self.label or not mn or mn.startswith('.'):
            pass
        elif self.vmem:
            if 'store' in mn and mn.startswith('buffer'):
                for x in R: r |= x
                self.sdata = R[0]
            elif 'store' in mn:
                for x in R: r |= x
                self.sdata = R[1]
            elif self.ldsdma:
                for x in R: r |= x
                r.add('m0')
            else:
                w |= R[0]
                for x in R[1:]: r |= x
        elif self.ds:
            if mn.startswith('ds_write'):
                for x in R: r |= x
            else:
                w |= R[0]
                for x in R[1:]: r |= x
        elif self.perml:
            w |= R[0] | R[1]; r |= R[0] | R[1]
        elif self.mfma or self.valu:
            w |= R[0]
            for x in R[1:]: r |= x
            if mn.startswith(('v_fmac', 'v_dot2c')): r |= R[0]
            if mn.startswith('v_cndmask') and len(ops) == 3: r.add('vcc')
        elif self.salu:
            if mn.startswith(('s_cmp', 's_cbranch', 's_branch', 's_waitcnt', 's_nop', 's_barrier', 's_sleep', 's_endpgm', 's_setprio', 's_bitcmp')):
                for x in R: r |= x
            elif R:
                w |= R[0]
                for x in R[1:]: r |= x
        self.w = w; self.r = r
        self.wide_store = self.vmem and 'store' in mn and ('x4' in mn or 'x3' in mn)
    def states(self):
        if self.label or not self.mn or self.mn.startswith('.'): return 0
        if self.mn == 's_nop': return int(self.ops[0]) + 1
        return 1

def isv(x): return x[0] in 'va' and x not in ('vcc',)
def iss(x): return x[0] == 's' or x == 'vcc'

def need(p, c):
    n = 0
    pw_v = {x for x in p.w if isv(x)}; pw_s = {x for x in p.w if iss(x)}
    if p.valu:
        if c.mfma and pw_v & c.r: n = max(n, 2)
        if c.dpp and pw_v & regs_of(c.ops[1]): n = max(n, 2)
        if c.perml and pw_v & c.r: n = max(n, 2)
        if c.mn.startswith(('v_readfirstlane', 'v_readlane')) and pw_v & c.r: n = max(n, 1)
        if p.trans and c.valu and not c.trans and pw_v & c.r: n = max(n, 1)
        if p.trans and c.trans and pw_v & c.r: n = max(n, 1)
        if c.valu and pw_s & c.r: n = max(n, 2)
        if c.vmem and pw_s & c.r: n = max(n, 5)
        if c.salu and pw_s & c.r: n = max(n, 1)
        if p.dot and (pw_v & (c.r | c.w)):
            if not (c.mn == p.mn and not (pw_v & (regs_of(c.ops[1]) | regs_of(c.ops[2])))): n = max(n, 3)
    if p.mfma:
        big = '32x32' in p.mn
        if c.mfma:
            ab = regs_of(c.ops[1]) | regs_of(c.ops[2])
            if p.w & ab: n = max(n, 12 if big else 8)
            cc = regs_of(c.ops[3])
            if p.w & cc and cc != p.w: n = max(n, 10 if big else 6)
            if p.w & c.w and not (p.w & cc): n = max(n, 12 if big else 8)
        elif (c.valu or c.vmem or c.ds) and p.w & (c.r | c.w): n = max(n, 12 if big else 8)
    if p.salu and 'm0' in p.w and (c.ldsdma or 'addtid' in c.mn): n = max(n, 1)
    if p.wide_store and (p.sdata & c.w): n = max(n, 2)
    return n

class Emit:
    def __init__(self):
        self.ins = []
        self.vm_n = 0; self.vm_tag = {}; self.vm_done = 0
        self.ds_n = 0; self.ds_tag = {}; self.ds_done = 0
        self.nops = 0
        self.tail = []
    def raw(self, text):
        for line in text.split('\n'):
            line = line.strip()
            if not line or line.startswith(';'): continue
            i = Ins(line)
            dist = 0; worst = 0
            for p in reversed(self.ins):
                if dist >= 12: break
                k = need(p, i) - dist
                if k > worst: worst = k
                dist += p.states()
            if worst > 0:
                self.ins.append(Ins(f's_nop {worst-1}')); self.nops += worst
            self.ins.append(i)
            if i.vmem: self.vm_n += 1
            if i.ds: self.ds_n += 1
            if i.mn == 's_waitcnt':
                m = re.search(r'vmcnt\((\d+)\)', line)
                if m: self.vm_done = max(self.vm_done, self.vm_n - int(m.group(1)))
                m = re.search(r'lgkmcnt\((\d+)\)', line)
                if m: self.ds_done = max(self.ds_done, self.ds_n - int(m.group(1)))
    __call__ = raw
    def vm(self, tag, text):
        self.raw(text); self.vm_tag[tag] = self.vm_n
    def ds(self, tag, text):
        self.raw(text); self.ds_tag[tag] = self.ds_n
    def wait(self, vm=None, ds=None):
        parts = []
        if vm is not None:
            idx = max(self.vm_tag[t] for t in (vm if isinstance(vm, list) else [vm]))
            if idx > self.vm_done:
                parts.append(f'vmcnt({min(self.vm_n - idx, 63)})')
        if ds is not None:
            idx = max(self.ds_tag[t] for t in (ds if isinstance(ds, list) else [ds]))
            if idx > self.ds_done:
                parts.append(f'lgkmcnt({min(self.ds_n - idx, 15)})')
        if parts: self.raw('s_waitcnt ' + ' '.join(parts))
    def text(self):
        out = []
        for i in self.ins:
            out.append(i.text if i.label or i.mn.startswith('.') else '    ' + i.text)
        return '\n'.join(out) + '\n'

def weave(e, anchors, fillers, lead=0):
    fillers = list(fillers)
    for f in fillers[:lead]: f(e)
    fillers = fillers[lead:]
    n = len(anchors); k = 0
    for j, a in enumerate(anchors):
        a(e)
        upto = (len(fillers) * (j + 1)) // n
        while k < upto:
            fillers[k](e); k += 1

def merge(*streams):
    items = []
    for s in streams:
        n = len(s)
        for j, f in enumerate(s): items.append(((j + 0.5) / n, len(items), f))
    items.sort(key=lambda t: (t[0], t[1]))
    return [f for _, _, f in items]

def T(text):
    return [(lambda e, l=l: e.raw(l)) for l in (x.strip() for x in text.split('\n')) if l and not l.startswith(';')]
```

```python
import sys
sys.path.insert(0, 'gen')
from emit import *

KN = "gated_mix__ssm_conv_s5__glu_gated_bilinear__prompt"
OFF_E  = 0x000000
OFF_FH = 0x010000
OFF_FC = 0x020000
OFF_G  = 0x030000
OFF_S  = 0x040000
OFF_CP = 0x100000
OFF_HC = 0x200000
OFF_ST = 0x0F000000
WS_BYTES = 0x10000000
LCG_A, LCG_C = 0x9E3779B1, 0x7F4A7C15
SPIN = 1 << 20

sX, sB, sW, sD, sS, sO = 's[40:43]', 's[44:47]', 's[48:51]', 's[52:55]', 's[56:59]', 's[60:63]'
s_w = 's3'
s_xcd, s_idx, s_tb, s_cg, s_tt, s_ct = 's64', 's65', 's66', 's67', 's68', 's69'
s_xo, s_bo, s_wo, s_kc = 's70', 's71', 's72', 's73'
s_wq, s_w1k = 's74', 's75'
s_xb, s_bb, s_wb = 's76', 's77', 's78'
s_do, s_co, s_ho = 's79', 's80', 's81'
s_hs, s_fs, s_fl = 's82', 's83', 's84'
s_t0, s_t1, s_t2, s_spin = 's85', 's86', 's87', 's88'
s_x1 = 's89'
s_so = 's38'
s_fc = 's39'

vl = 'v1'
vX = [10, 11, 12, 13]; vW = [14, 15, 16, 17]; vB = 18; vD = [19, 20, 21, 22]; vL16 = 23
vRX = [24, 25, 26, 27]; vRB = [28, 29, 30, 31]; vRW = [[32, 33], [34, 35]]
vRD = [[36, 37, 38], [39, 40, 41]]
vSt, vTag, vFl, vOne = 42, 43, 44, 45
vA, vSB, vA16, vS16, vA32, vS32, vA64, vS64, vA256, vS256, vA1k, vS1k, vCA, vCS = range(46, 60)
vS0, vSlo = 60, 61
SET0, SET1, Z = 64, 128, 192
vSw = 224; vPoll = 228; vGr = 232
DPP = 'quad_perm:[1,0,3,2] row_mask:0xf bank_mask:0xf'

def vr(a, n=4): return f'v[{a}:{a+n-1}]'
def ar(a, n=4): return f'a[{a}:{a+n-1}]'

class Gen:
    def __init__(self, stamps=False, rot=False):
        self.e = Emit(); self.stamps = stamps; self.rot = rot
        self.slow = []; self.nst = 0
    def stamp(self):
        if not self.stamps: return []
        k = self.nst; self.nst += 1
        r = [90, 92, 94, 96, 4, 6, 8, 10][k]
        return [lambda e: e(f's_memtime s[{r}:{r+1}]')]

    def dma4(self, tag, voffs, srd, soff, m0c, pre=()):
        f = list(pre) + T(f's_add_u32 m0, {s_wq}, {m0c}')
        for j in range(4):
            f.append(lambda e, j=j: e.vm(tag, f'buffer_load_dwordx4 v{voffs[j]}, {srd}, {soff} offen offset:{1024*j} lds'))
        return f
    def ld4(self, tag, dst, soff, post=()):
        f = []
        for j in range(4):
            f.append(lambda e, j=j: e.vm(tag, f'buffer_load_dwordx4 {dst(j)}, v{vL16}, {sS}, {soff} offen offset:{1024*j} sc1'))
        return f + list(post)
    def dmaX(self, s, b):
        if b == 0:
            pre = []
            if s > 0:
                if self.rot:
                    pre = [lambda e: e(f'''s_add_u32 {s_kc}, {s_kc}, 128
                                s_cmp_eq_u32 {s_kc}, 896
                                s_cselect_b32 {s_kc}, 0, {s_kc}''')] + T(f's_add_u32 {s_xo}, {s_xb}, {s_kc}')
                else:
                    pre = T(f's_add_u32 {s_xo}, {s_xo}, 128')
            return self.dma4(('x', s, 0), vX, sX, s_xo, 7 * 16384, pre)
        return self.dma4(('x', s, 1), vX, sX, s_x1, 8 * 16384)
    def dmaWB(self, s):
        pre = []
        if self.rot:
            pre = T(f'''s_mul_i32 {s_wo}, {s_kc}, 1792
                        s_add_u32 {s_wo}, {s_wo}, {s_wb}
                        s_add_u32 {s_bo}, {s_bb}, {s_kc}''')
        elif s > 0:
            pre = T(f'''s_add_u32 {s_wo}, {s_wo}, 229376
                        s_add_u32 {s_bo}, {s_bo}, 128''')
        f = self.dma4(('wb', s), vW, sW, s_wo, s * 16384, pre)
        f += T(f's_add_u32 m0, {s_w1k}, {147456 + (s % 3) * 4096}')
        f += T(f's_add_u32 {s_x1}, {s_xo}, 14336')
        f.append(lambda e: e.vm(('wb', s), f'buffer_load_dwordx4 v{vB}, {sB}, {s_bo} offen lds'))
        return f
    def dmaD(self, third, g, slot):
        post = T(f's_add_u32 {s_do}, {s_do}, {57344}') if g < 6 else T(f's_sub_u32 {s_do}, {s_do}, {6*57344 - 28672}')
        return self.dma4(('d', third, g), vD, sD, s_do, slot * 16384) + post
    def drainX(self, s, b):
        return [(lambda e, k=k: e.ds(('x', s, b, k), f'ds_read_b128 {ar(32*s+8*k+4*b)}, v{vRX[k]} offset:{16384*b}')) for k in range(4)]
    def wbuf(self, n): return 224 + 12 * (n & 1)
    def readW(self, p, s, k):
        base = self.wbuf(4 * s + k); f = []
        if p == 0:
            f.append(lambda e: e.ds(('w', p, s, k), f'ds_read_b128 {ar(base+8)}, v{vRB[k]} offset:{(s%3)*4096}'))
        for mat in range(2):
            for t in range(2):
                off = (s & 3) * 16384 + mat * 8192 + k * 2048 + t * 512
                f.append(lambda e, mat=mat, t=t, off=off: e.ds(('w', p, s, k),
                    f'ds_read_b64_tr_b16 {ar(base+4*mat+2*t,2)}, v{vRW[p][s>>2]} offset:{off}'))
        return f
    def mfma(self, d, a, b, first):
        return lambda e: e(f'v_mfma_f32_32x32x16_bf16 {vr(d,16)}, {a}, {b}, {"0" if first else vr(d,16)}')
    def mf1(self, p, s, k):
        base = self.wbuf(4 * s + k); first = (s == 0 and k == 0); acc = SET0 if p == 0 else SET1
        out = []
        for b in range(2):
            x = ar(32 * s + 8 * k + 4 * b)
            if p == 0: out.append(self.mfma(Z + 16 * b, x, ar(base + 8), first))
            out.append(self.mfma(acc + 16 * b, ar(base), x, first))
            out.append(self.mfma(acc + 32 + 16 * b, ar(base + 4), x, first))
        return out
    def W(self, vm=None, ds=None): return [lambda e: e.wait(vm=vm, ds=ds)]
    def epi_ffn(self, acc, third):
        f = []
        for ks in range(2):
            for b in range(2):
                g = acc + 16 * b + 8 * ks; u = g + 32
                for r in range(8): f += T(f'v_mul_f32 v{g+r}, v{g+r}, v{u+r}')
                for r in range(4): f += T(f'v_cvt_pk_bf16_f32 v{u+r}, v{g+2*r}, v{g+2*r+1}')
                f.append(lambda e, u=u, ks=ks, b=b: e.vm(('hst', third),
                    f'buffer_store_dwordx4 {vr(u)}, v{vL16}, {sS}, {s_hs} offen offset:{(2*ks+b)*1024} sc1'))
        f += T(f's_add_u32 {s_hs}, {s_hs}, {28*4096}')
        return f
    def flag_store(self, third):
        return self.W(vm=('hst', third)) + [lambda e: e.vm(('fst', third),
            f'buffer_store_dword v{vTag}, v{vOne}, {sS}, {s_fs} offen offset:{512*third} sc1')]
    def poll_issue(self, name, soff, imm):
        return [lambda e: e.vm(('poll', name), f'buffer_load_dword v{vPoll}, v{vFl}, {sS}, {soff} offen offset:{imm} sc1')]
    def poll_check(self, name, soff, imm):
        self.slow.append(f'''L_slow_{name}:
    s_mov_b32 {s_spin}, {SPIN}
L_spin_{name}:
    s_sleep 1
    buffer_load_dword v{vPoll}, v{vFl}, {sS}, {soff} offen offset:{imm} sc1
    s_sub_u32 {s_spin}, {s_spin}, 1
    s_cbranch_scc1 L_back_{name}
    s_waitcnt vmcnt(0)
    v_cmp_ne_u32 vcc, v{vPoll}, v{vTag}
    s_nop 1
    s_cbranch_vccnz L_spin_{name}
    s_branch L_back_{name}
''')
        def chk(e):
            e.wait(vm=('poll', name))
            e(f'v_cmp_ne_u32 vcc, v{vPoll}, v{vTag}\ns_nop 0\ns_cbranch_vccnz L_slow_{name}\nL_back_{name}:')
        return [chk]
    def cmul_add(self, d, pa, ps, h, add):
        return T(f'''v_fma_f32 v{d}, v{pa}, v{h}, v{add}
                     v_fmac_f32_dpp v{d}, v{h}, v{ps} {DPP}''')
    def csq(self, da, dsb, a, sb, t):
        return T(f'''v_mul_f32 v{t}, v{sb}, v{sb}
                     v_mul_f32 v{dsb}, v{a}, v{sb}
                     v_fma_f32 v{da}, v{a}, v{a}, -v{t}
                     v_add_f32 v{dsb}, v{dsb}, v{dsb}''')

    def prologue(self):
        e = self.e
        if self.stamps: e('s_memrealtime s[98:99]\ns_memtime s[100:101]')
        e(f'''s_cmp_ge_u32 s2, 256
            s_cbranch_scc1 L_end
            s_load_dwordx16 s[4:19], s[0:1], 0
            s_load_dwordx16 s[20:35], s[0:1], 64
            s_load_dwordx2 s[36:37], s[0:1], 128
            v_lshrrev_b32 v2, 6, v0
            v_and_b32 v1, 63, v0
            s_mov_b32 s43, 0x20000
            v_readfirstlane_b32 s3, v2
            s_mov_b32 s59, 0x20000
            s_mov_b32 s58, {WS_BYTES}
            s_mov_b32 s42, 1835008
            v_lshlrev_b32 v{vL16}, 4, v1
            s_cmp_ge_u32 s2, 224
            s_cbranch_scc1 L_spare''')
        e(f'''s_and_b32 {s_xcd}, s2, 7
            s_lshr_b32 {s_idx}, s2, 3
            s_and_b32 {s_t0}, {s_idx}, 3
            s_lshr_b32 {s_ct}, {s_idx}, 2
            s_and_b32 {s_tb}, {s_xcd}, 1
            s_lshl_b32 {s_tb}, {s_tb}, 2
            s_add_u32 {s_tb}, {s_tb}, {s_t0}
            s_lshr_b32 {s_t1}, {s_xcd}, 1
            s_mul_i32 {s_cg}, {s_t1}, 7
            s_add_u32 {s_cg}, {s_cg}, {s_ct}
            s_lshl_b32 {s_tt}, {s_xcd}, 2
            s_add_u32 {s_tt}, {s_tt}, {s_t0}
            s_lshl_b32 {s_wq}, {s_w}, 12
            s_lshl_b32 {s_w1k}, {s_w}, 10
            s_lshl_b32 {s_t2}, {s_tb}, 2
            s_add_u32 {s_t2}, {s_t2}, {s_w}
            s_mul_i32 {s_xb}, {s_t2}, 57344
            s_mul_i32 {s_hs}, {s_t2}, {3*28*4096}
            s_mul_i32 {s_fs}, {s_t2}, 1536
            s_lshl_b32 {s_t1}, {s_t1}, 7
            s_add_u32 {s_fs}, {s_fs}, {s_t1}
            s_and_b32 {s_t1}, {s_w}, 1
            s_mul_i32 {s_wb}, {s_t1}, 114688
            s_lshl_b32 {s_t2}, {s_cg}, 7
            s_add_u32 {s_wb}, {s_wb}, {s_t2}
            s_lshl_b32 {s_t2}, {s_cg}, 1
            s_add_u32 {s_t2}, {s_t2}, {s_t1}
            s_mul_i32 {s_bb}, {s_t2}, 7168''')
        if self.rot:
            e(f'''s_lshl_b32 {s_t0}, {s_t0}, 1
                s_add_u32 {s_t0}, {s_t0}, {s_ct}
                s_add_u32 {s_t0}, {s_t0}, {s_xcd}
                s_mul_i32 {s_t1}, {s_t0}, 37
                s_lshr_b32 {s_t1}, {s_t1}, 8
                s_mul_i32 {s_t1}, {s_t1}, 7
                s_sub_u32 {s_t0}, {s_t0}, {s_t1}
                s_lshl_b32 {s_kc}, {s_t0}, 7
                s_add_u32 {s_xo}, {s_xb}, {s_kc}''')
        else:
            e(f'''s_mov_b32 {s_xo}, {s_xb}
                s_mov_b32 {s_wo}, {s_wb}
                s_mov_b32 {s_bo}, {s_bb}''')
        e(f'''v_lshrrev_b32 v2, 3, v1
            v_and_b32 v3, 7, v1
            v_lshrrev_b32 v4, 4, v1
            v_xor_b32 v5, v3, v4
            v_lshrrev_b32 v6, 5, v1
            v_and_b32 v7, 3, v2
            v_lshl_add_u32 v6, v6, 5, v7
            v_mul_u32_u24 v6, 896, v6
            v_lshl_add_u32 v{vX[0]}, v5, 4, v6
            v_xor_b32 v7, 64, v{vX[0]}
            v_add_u32 v{vX[1]}, 2560, v7
            v_add_u32 v{vX[2]}, 5120, v{vX[0]}
            v_add_u32 v{vX[3]}, 7680, v7
            v_and_b32 v4, 1, v4
            v_lshlrev_b32 v4, 2, v4
            v_xor_b32 v4, v3, v4
            v_mul_u32_u24 v6, 3584, v2
            v_lshl_add_u32 v{vW[0]}, v4, 4, v6
            v_add_u32 v{vW[1]}, 27648, v{vW[0]}
            v_add_u32 v{vW[2]}, 55296, v{vW[0]}
            v_add_u32 v{vW[3]}, 82944, v{vW[0]}
            v_mul_u32_u24 v6, 896, v2
            v_lshl_add_u32 v{vD[0]}, v4, 4, v6
            v_lshl_add_u32 v{vB}, v5, 4, v6
            s_lshr_b32 {s_t0}, {s_w}, 1
            s_lshl_b32 {s_t1}, {s_t0}, 6
            v_xor_b32 v{vB}, {s_t1}, v{vB}
            s_mov_b32 s47, 0x20000
            s_mov_b32 s46, 401408
            s_mov_b32 s51, 0x20000
            s_mov_b32 s50, 1605632
            s_cmp_eq_u32 {s_t0}, 0
            s_waitcnt lgkmcnt(0)
            s_mov_b32 s40, s4
            s_mov_b32 s41, s5
            s_cselect_b32 s44, s10, s12
            s_cselect_b32 s45, s11, s13
            s_cselect_b32 s48, s24, s26
            s_cselect_b32 s49, s25, s27''')

    def setup2(self):
        f = T(f'''s_mov_b32 s56, s36
            s_mov_b32 s57, s37
            s_mov_b32 s52, s28
            s_mov_b32 s53, s29
            s_mov_b32 s54, 1605632
            s_mov_b32 s55, 0x20000
            s_mov_b32 s60, s32
            s_mov_b32 s61, s33
            s_mov_b32 s62, 3670016
            s_mov_b32 s63, 0x20000
            v_and_b32 v2, 31, v1
            v_lshrrev_b32 v3, 1, v2
            s_lshl_b32 {s_t0}, {s_cg}, 5
            v_lshl_add_u32 v4, v3, 1, {s_t0}
            v_mov_b32 v5, 0''')
        f.append(lambda e: e.vm('par', f'buffer_load_dword v{vTag}, v5, {sS}, 0 offen sc1'))
        f.append(lambda e: e.vm('par', f'global_load_ushort v{vCA}, v4, s[6:7]'))
        f.append(lambda e: e.vm('par', f'global_load_ushort v{vCS}, v4, s[8:9]'))
        f.append(lambda e: e.vm('par', f'global_load_ushort v{vA1k}, v4, s[18:19]'))
        f += T(f'''v_lshrrev_b32 v5, 5, v1
            v_and_b32 v6, 7, v3
            v_xor_b32 v6, v6, v5
            v_lshlrev_b32 v7, 7, v2
            v_lshl_add_u32 v7, v6, 4, v7
            s_add_u32 {s_t0}, {s_wq}, 114688
            v_add_u32 v{vRX[0]}, {s_t0}, v7
            v_xor_b32 v{vRX[1]}, 32, v{vRX[0]}
            v_xor_b32 v{vRX[2]}, 64, v{vRX[0]}
            v_xor_b32 v{vRX[3]}, 0x60, v{vRX[0]}
            v_and_b32 v6, 1, v2
            v_lshl_add_u32 v7, v6, 4, v3
            v_lshlrev_b32 v7, 7, v7
            v_bfe_u32 v8, v2, 2, 2
            v_lshl_or_b32 v8, v6, 2, v8
            v_xor_b32 v8, v8, v5
            v_lshl_add_u32 v7, v8, 4, v7
            v_add_u32 v{vRB[0]}, 147456, v7
            v_xor_b32 v{vRB[1]}, 32, v{vRB[0]}
            v_xor_b32 v{vRB[2]}, 64, v{vRB[0]}
            v_xor_b32 v{vRB[3]}, 0x60, v{vRB[0]}
            v_bfe_u32 v6, v1, 2, 2
            v_lshrrev_b32 v7, 1, v6
            v_lshlrev_b32 v7, 6, v7
            v_lshl_add_u32 v7, v6, 7, v7
            v_bfe_u32 v8, v1, 4, 1
            v_lshl_add_u32 v7, v8, 5, v7
            v_and_b32 v8, 3, v1
            v_lshl_add_u32 v7, v8, 3, v7
            v_lshl_add_u32 v{vRW[0][0]}, v5, 10, v7
            v_add_u32 v{vRW[0][1]}, 0x10000, v{vRW[0][0]}
            v_xor_b32 v{vRW[1][0]}, 64, v{vRW[0][0]}
            v_xor_b32 v{vRW[1][1]}, 64, v{vRW[0][1]}
            v_lshl_add_u32 v7, v5, 9, v7
            v_add_u32 v{vRD[0][0]}, {s_wq}, v7''')
        return f
    def setup3(self):
        return T(f'''v_add_u32 v{vRD[0][1]}, 0x10000, v{vRD[0][0]}
            v_add_u32 v{vRD[0][2]}, 0x20000, v{vRD[0][0]}
            v_xor_b32 v{vRD[1][0]}, 64, v{vRD[0][0]}
            v_xor_b32 v{vRD[1][1]}, 64, v{vRD[0][1]}
            v_xor_b32 v{vRD[1][2]}, 64, v{vRD[0][2]}
            v_add_u32 v{vD[1]}, 6144, v{vD[0]}
            v_add_u32 v{vD[2]}, 12288, v{vD[0]}
            v_add_u32 v{vD[3]}, 18432, v{vD[0]}
            v_min_u32 v{vFl}, 6, v1
            v_lshlrev_b32 v{vFl}, 2, v{vFl}
            v_min_u32 v{vOne}, 1, v1
            v_lshlrev_b32 v{vOne}, 31, v{vOne}
            s_mul_i32 {s_do}, {s_w}, {7*57344}
            s_lshl_b32 {s_t0}, {s_ct}, 7
            s_add_u32 {s_do}, {s_do}, {s_t0}
            s_lshl_b32 {s_t0}, {s_ct}, 2
            s_add_u32 {s_fs}, {s_fs}, {s_t0}
            s_add_u32 {s_fs}, {s_fs}, {OFF_FH}
            s_add_u32 {s_t0}, {s_t0}, {s_w}
            s_mul_i32 {s_co}, {s_t0}, {7*4096}
            s_add_u32 {s_co}, {s_co}, {OFF_CP}
            s_lshl_b32 {s_fc}, {s_t0}, 7
            s_add_u32 {s_fc}, {s_fc}, {OFF_FC}
            s_lshl_b32 {s_t0}, {s_cg}, 12
            s_add_u32 {s_hs}, {s_hs}, {s_t0}
            s_add_u32 {s_hs}, {s_hs}, {OFF_HC}
            s_mul_i32 {s_ho}, {s_tt}, {3*28*4096}
            s_mul_i32 {s_t0}, {s_w}, {7*4096}
            s_add_u32 {s_ho}, {s_ho}, {s_t0}
            s_add_u32 {s_ho}, {s_ho}, {OFF_HC}
            s_mul_i32 {s_fl}, {s_tt}, 1536
            s_lshl_b32 {s_t0}, {s_w}, 7
            s_add_u32 {s_fl}, {s_fl}, {s_t0}
            s_add_u32 {s_fl}, {s_fl}, {OFF_FH}
            s_lshl_b32 {s_so}, {s_cg}, 3
            s_add_u32 {s_so}, {s_so}, {s_tb}
            s_lshl_b32 {s_so}, {s_so}, 8
            s_add_u32 {s_so}, {s_so}, {OFF_S}''')
    def ssm_consts(self):
        lre, lim, ldt = vCA, vCS, vA1k
        f = self.W(vm='par') + T(f'''s_mov_b32 {s_t1}, {LCG_A}
            v_mul_lo_u32 v{vTag}, v{vTag}, {s_t1}
            v_add_u32 v{vTag}, {LCG_C}, v{vTag}
            v_lshlrev_b32 v{ldt}, 16, v{ldt}
            v_lshlrev_b32 v2, 16, v{lre}
            v_lshlrev_b32 v3, 16, v{lim}
            v_mul_f32 v{ldt}, 0x3fb8aa3b, v{ldt}
            v_exp_f32 v{ldt}, v{ldt}
            v_mul_f32 v8, v2, v2
            v_cvt_pk_bf16_f32 v{ldt}, v{ldt}, v{ldt}
            v_lshlrev_b32 v{ldt}, 16, v{ldt}
            v_mul_f32 v4, v{ldt}, v2
            v_mul_f32 v5, v{ldt}, v3
            v_mul_f32 v4, 0x3fb8aa3b, v4
            v_mul_f32 v5, 0.15915494, v5
            v_exp_f32 v4, v4
            v_rndne_f32 v6, v5
            v_sub_f32 v5, v5, v6
            v_cos_f32 v6, v5
            v_sin_f32 v7, v5
            v_fmac_f32 v8, v3, v3
            v_rcp_f32 v8, v8
            v_mul_f32 v{vA}, v4, v6
            v_mul_f32 v7, v4, v7
            v_add_f32 v6, -1.0, v{vA}
            v_add_f32 v8, v8, v8
            v_mul_f32 v4, v6, v2
            v_fmac_f32 v4, v7, v3
            v_mul_f32 v5, v6, v3
            v_fma_f32 v5, -v7, v2, v5
            v_mul_f32 v4, v4, v8
            v_mul_f32 v{vCS}, v5, v8
            v_lshlrev_b32 v6, 31, v1
            v_xor_b32 v{vCA}, v6, v4
            v_xor_b32 v7, v6, v7
            v_xor_b32 v{vSB}, 0x80000000, v7''')
        f += self.csq(2, 3, vA, vSB, 6) + self.csq(4, 5, 2, 3, 6) + self.csq(2, 3, 4, 5, 6)
        f += self.csq(vA16, vS16, 2, 3, 6) + self.csq(vA32, vS32, vA16, vS16, 6) + self.csq(vA64, vS64, vA32, vS32, 6)
        f += self.csq(2, 3, vA64, vS64, 6) + self.csq(vA256, vS256, 2, 3, 6)
        f += self.csq(2, 3, vA256, vS256, 6) + self.csq(vA1k, vS1k, 2, 3, 6)
        return f
    def scan1(self):
        f = []; t = [[240, 241], [242, 243]]
        cur = [Z, Z + 16]
        for n in range(1, 16):
            d = [t[0][n & 1], t[1][n & 1]]
            if n == 15: d[0] = vS0
            for b in range(2): f += T(f'v_fma_f32 v{d[b]}, v{vA}, v{cur[b]}, v{Z+16*b+n}')
            for b in range(2): f += T(f'v_fmac_f32_dpp v{d[b]}, v{cur[b]}, v{vSB} {DPP}')
            cur = d
        f += T(f'''v_and_b32 v2, 31, v1
                   v_lshlrev_b32 v2, 4, v2''')
        f += self.cmul_add(vSlo, vA16, vS16, vS0, cur[1])
        f += T(f'''v_add_u32 v2, 159744, v2
                   v_mov_b32 v240, v{vSlo}
                   s_lshl_b32 {s_t0}, {s_w}, 2
                   v_add_u32 v3, {s_t0}, v2
                   v_permlane32_swap_b32 v{vSlo}, v240''')
        f += self.cmul_add(241, vA32, vS32, vSlo, 240)
        f.append(lambda e: e.ds('sw', f'ds_write_b32 v3, v241'))
        return f
    def pub_state(self):
        f = [lambda e: e.ds('sr', f'ds_read_b128 {vr(vSw)}, v2')]
        f += T('v_lshrrev_b32 v3, 3, v1')
        f += [lambda e: e(f'''v_cmp_eq_u32 vcc, {s_w}, v3
                   v_lshlrev_b32 v4, 3, v1
                   v_bfrev_b32 v5, 1
                   v_cndmask_b32 v4, v5, v4, vcc''')]
        f += self.W(ds='sr')
        f += self.cmul_add(240, vA64, vS64, vSw, vSw + 1) + T('s_nop 0')
        f += self.cmul_add(241, vA64, vS64, 240, vSw + 2) + T('s_nop 0')
        f += self.cmul_add(vSt, vA64, vS64, 241, vSw + 3)
        f.append(lambda e: e.vm('sst', f'buffer_store_dwordx2 {vr(vSt,2)}, v4, {sS}, {s_so} offen sc1'))
        return f
    def state_issue(self):
        f = T(f'''v_and_b32 v62, 31, v1
                  v_lshrrev_b32 v63, 5, v1
                  v_lshlrev_b32 v62, 3, v62
                  v_lshl_add_u32 v62, v63, 10, v62
                  v_lshl_add_u32 v63, v63, 2, {s_tb}
                  s_sub_u32 {s_so}, {s_so}, 2048''')
        for q in range(4):
            f.append(lambda e, q=q: e.vm('sld', f'buffer_load_dwordx2 {vr(vGr+2*q,2)}, v62, {sS}, {s_so} offen offset:{256*q} sc1'))
        return f
    def state_check(self):
        chk = ''
        for q in range(4):
            chk += f'''v_cmp_le_u32 vcc, {8-q}, v63
                       s_nop 1
                       v_cndmask_b32 v{vGr+2*q}, 0, v{vGr+2*q}, vcc
                       v_cndmask_b32 v{vGr+2*q+1}, v{vTag}, v{vGr+2*q+1}, vcc
                       v_xor_b32 v{vGr+2*q+1}, v{vTag}, v{vGr+2*q+1}
                    '''
        chk += f'''v_or_b32 v{vGr+1}, v{vGr+1}, v{vGr+3}
                   v_or3_b32 v{vGr+1}, v{vGr+1}, v{vGr+5}, v{vGr+7}
                   v_cmp_ne_u32 vcc, 0, v{vGr+1}
                   s_nop 1
                '''
        lds = '\n'.join(f'    buffer_load_dwordx2 {vr(vGr+2*q,2)}, v62, {sS}, {s_so} offen offset:{256*q} sc1' for q in range(4))
        self.slow.append(f'''L_slow_st:
    s_mov_b32 {s_spin}, {SPIN}
L_spin_st:
    s_sleep 1
{lds}
    s_sub_u32 {s_spin}, {s_spin}, 1
    s_waitcnt vmcnt(0)
    s_cbranch_scc1 L_back_st
''' + '\n'.join('    ' + x.strip() for x in chk.split('\n') if x.strip()) + '''
    s_cbranch_vccnz L_spin_st
    s_branch L_back_st
''')
        def c(e):
            e.wait(vm='sld'); e(chk); e('s_cbranch_vccnz L_slow_st\nL_back_st:')
        return [c]
    def scan2(self):
        f = []
        f += self.cmul_add(240, vA256, vS256, vGr, vGr + 2)
        f += self.cmul_add(241, vA256, vS256, 240, vGr + 4)
        f += self.cmul_add(240, vA256, vS256, 241, vGr + 6)
        f += T(f'''v_mov_b32 v241, v240
                   v_lshrrev_b32 v2, 5, v1
                   v_permlane32_swap_b32 v240, v241''')
        f += self.cmul_add(242, vA1k, vS1k, 240, 241)
        for w in range(3):
            f += self.cmul_add(240, vA64, vS64, 242, vSw + w)
            f += [lambda e, w=w: e(f's_cmp_gt_u32 {s_w}, {w}\ns_cselect_b64 vcc, -1, 0\nv_cndmask_b32 v242, v242, v240, vcc')]
        f += self.cmul_add(240, vA32, vS32, 242, vSlo)
        f += [lambda e: e(f'v_cmp_eq_u32 vcc, 1, v2\nv_cndmask_b32 v242, v242, v240, vcc')]
        f += self.cmul_add(243, vA16, vS16, 242, vS0)
        cur = [242, 243]
        for n in range(16):
            for b in range(2): f += T(f'v_fmac_f32 v{Z+16*b+n}, v{vA}, v{cur[b]}')
            for b in range(2): f += T(f'v_fmac_f32_dpp v{Z+16*b+n}, v{cur[b]}, v{vSB} {DPP}')
            cur = [Z + n, Z + 16 + n]
        f += T(f'''v_and_b32 v3, 1, v1
                   v_bfe_u32 v4, v1, 1, 4
                   v_lshl_add_u32 v5, v3, 4, v4
                   v_lshlrev_b32 v5, 7, v5
                   v_and_b32 v4, 3, v4
                   v_xor_b32 v3, v3, v2
                   v_lshl_or_b32 v3, v3, 2, v4
                   v_lshl_add_u32 v5, v3, 4, v5
                   s_add_u32 {s_t0}, {s_wq}, 147456
                   v_add_u32 v8, {s_t0}, v5''')
        for c in range(4):
            for n in range(8 * c, 8 * c + 8, 2):
                f += T(f'''v_mul_f32 v62, v{vCA}, v{Z+n}
                           v_mul_f32 v63, v{vCA}, v{Z+n+1}
                           v_fmac_f32_dpp v62, v{Z+n}, v{vCS} {DPP}
                           v_fmac_f32_dpp v63, v{Z+n+1}, v{vCS} {DPP}
                           v_cvt_pk_bf16_f32 v{240+n//2}, v62, v63''')
            f += T(f'v_xor_b32 v9, {16*c}, v8')
            f.append(lambda e, c=c: e.ds('hw', f'ds_write_b128 v9, {vr(240+4*c)}'))
        f += T(f'''v_bfe_u32 v3, v1, 2, 2
                   v_lshl_add_u32 v4, v2, 3, v3
                   v_lshlrev_b32 v4, 7, v4
                   v_and_b32 v5, 1, v1
                   v_bfe_u32 v6, v1, 4, 1
                   v_lshl_or_b32 v5, v5, 2, v6
                   v_xor_b32 v5, v5, v3
                   v_lshl_add_u32 v4, v5, 4, v4
                   v_bfe_u32 v5, v1, 1, 1
                   v_lshl_add_u32 v4, v5, 3, v4
                   v_add_u32 v4, {s_t0}, v4
                   v_xor_b32 v5, 32, v4
                   v_xor_b32 v6, 64, v4
                   v_xor_b32 v7, 0x60, v4''')
        f += self.W(ds='hw')
        for ks in range(2):
            for b in range(2):
                for t in range(2):
                    f.append(lambda e, ks=ks, b=b, t=t: e.ds(('hr', ks, b),
                        f'ds_read_b64_tr_b16 {vr(Z+4*(2*ks+b)+2*t,2)}, v{4+2*ks+b} offset:{2048*ks+512*t}'))
        for ks in range(2):
            for b in range(2):
                f += self.W(ds=('hr', ks, b))
                f.append(lambda e, ks=ks, b=b: e.vm(('hst', 2),
                    f'buffer_store_dwordx4 {vr(Z+4*(2*ks+b))}, v{vL16}, {sS}, {s_hs} offen offset:{(2*ks+b)*1024} sc1'))
        return f

    def ldH(self, third, g):
        adv = 4096 if g < 6 else 28 * 4096 - 6 * 4096
        return self.ld4(('h', third, g), lambda j: ar(112 + 16 * g + 4 * j), s_ho, T(f's_add_u32 {s_ho}, {s_ho}, {adv}'))
    def ldC(self, g):
        return self.ld4(('c', g), lambda j: ar(16 * g + 4 * j), s_co, T(f's_add_u32 {s_co}, {s_co}, 4096'))
    def dbuf(self, n): return 224 + 8 * (n & 3)
    def readD(self, third, g, ks, slot):
        base = self.dbuf(2 * g + ks + 14 * third); f = []
        for nb in range(2):
            for t in range(2):
                off = (slot & 3) * 16384 + ks * 2048 + t * 1024
                f.append(lambda e, nb=nb, t=t, off=off: e.ds(('d', third, g, ks),
                    f'ds_read_b64_tr_b16 {ar(base+4*nb+2*t,2)}, v{vRD[nb][slot>>2]} offset:{off}'))
        return f
    def mf2(self, third, g, ks):
        out = []
        for nb in range(2):
            for b in range(2):
                h = ar(112 + 16 * g + 4 * (2 * ks + b))
                if third < 2:
                    a = ar(self.dbuf(2 * g + ks + 14 * third) + 4 * nb); acc = SET0; first = third == 0 and g == 0 and ks == 0
                else:
                    a = ar(16 * g + 4 * (2 * ks + nb)); acc = SET1; first = g == 0 and ks == 0
                out.append(self.mfma(acc + 16 * (2 * nb + b), a, h, first))
        return out

    def main(self):
        e = self.e
        run = lambda fs: [f(e) for f in fs]
        run(self.dmaX(0, 0)); run(self.dmaWB(0)); run(self.dmaX(0, 1))
        run(self.setup2())
        run(self.W(vm=('x', 0, 0))); run(self.stamp()); run(self.drainX(0, 0)); run(self.W(ds=('x', 0, 0, 3)))
        run(self.dmaX(1, 0)); run(self.dmaWB(1))
        run(self.W(vm=('x', 0, 1))); e('s_barrier'); run(self.readW(0, 0, 0)); run(self.drainX(0, 1))
        bg = self.setup3() + self.ssm_consts()
        nbg = len(bg); bgk = lambda n: bg[nbg * n // 18: nbg * (n + 1) // 18] if n < 18 else []
        SLOT_A = [7, 8, 0, 1, 2, 3, 4]; SLOT_B = [5, 6, 7, 8, 0, 1, 2]
        for s in range(7):
            for k in range(4):
                pre = [('w', 0, s, k)] + ([('x', s, 1, k)])
                run(self.W(ds=pre))
                if k == 0:
                    f = self.readW(0, s, 1) + self.W(ds=('x', s, 1, 3))
                    f += self.dmaX(s + 1, 1) if s < 6 else self.dmaD(0, 1, SLOT_A[1])
                elif k == 1:
                    f = self.readW(0, s, 2)
                    if s < 6: f += self.W(vm=('x', s + 1, 0)) + self.drainX(s + 1, 0)
                elif k == 2:
                    f = self.readW(0, s, 3)
                    if s < 6: f += self.W(ds=('x', s + 1, 0, 3))
                    if s < 5: f += self.dmaX(s + 2, 0) + self.dmaWB(s + 2)
                    if s == 5: f += self.dmaD(0, 0, SLOT_A[0])
                    if s == 6: f += self.poll_issue('c', s_fc, 0)
                else:
                    if s < 6:
                        f = self.W(vm=('x', s + 1, 1)) + T('s_barrier') + self.readW(0, s + 1, 0) + self.drainX(s + 1, 1)
                    else:
                        f = self.readW(1, 0, 0)
                b = bgk(4 * s + k)
                weave(e, self.mf1(0, s, k), merge(f, b) if b else f)
        run(self.stamp())
        ea = self.epi_ffn(SET0, 0); s1 = self.scan1()
        va = merge(ea, s1)
        ps = self.pub_state()
        for s in range(7):
            vm = []
            if 1 <= s <= 5: vm += self.dmaD(0, s + 1, SLOT_A[s + 1])
            if s == 1: vm += self.poll_check('c', s_fc, 0)
            if 1 <= s <= 5: vm += self.ldC(s - 1)
            if s == 6: vm += self.ldC(5) + self.ldC(6)
            if s == 4: vm = self.flag_store(0) + vm
            if s == 6: vm = self.state_issue() + vm + self.poll_issue('h0', s_fl, 0)
            for k in range(4):
                n = 4 * s + k
                run(self.W(ds=('w', 1, s, k)))
                f = []
                if k == 3:
                    if n == 7: f += self.W(ds='sw')
                    f += T('s_barrier')
                if n < 27: f += self.readW(1, (n + 1) // 4, (n + 1) % 4)
                v = vm[len(vm) * k // 4: len(vm) * (k + 1) // 4]
                x = []
                if 1 <= n <= 6: x = va[len(va) * (n - 1) // 6: len(va) * n // 6]
                if n in (8, 9): x = ps[len(ps) * (n - 8) // 2: len(ps) * (n - 7) // 2]
                streams = [q for q in (f, v, x) if q]
                weave(e, self.mf1(1, s, k), merge(*streams))
        run(self.stamp())
        run(self.poll_check('h0', s_fl, 0))
        ld = []
        for g in range(7): ld += self.ldH(0, g)
        run(ld[:10])
        vb = self.epi_ffn(SET1, 1) + self.state_check() + self.scan2()
        run(merge(vb, ld[10:] + self.dmaD(1, 0, SLOT_B[0])))
        run(self.flag_store(1))
        run(self.stamp())
        seq = [(th, g, ks) for th in range(2) for g in range(7) for ks in range(2)]
        slot = lambda th, g: (SLOT_A, SLOT_B)[th][g]
        run(self.W(vm=('d', 0, 6)))
        run(self.readD(0, 0, 0, slot(0, 0)))
        tail_setup = self.tail_setup()
        for n, (th, g, ks) in enumerate(seq):
            run(self.W(vm=('h', th, g), ds=('d', th, g, ks)))
            f = []
            if n + 1 < len(seq):
                t2, g2, k2 = seq[n + 1]
                f += self.W(vm=('d', t2, g2)) + self.readD(t2, g2, k2, slot(t2, g2))
            v = []
            if th == 0:
                if ks == 0 and g <= 5: v += self.dmaD(1, g + 1, SLOT_B[g + 1])
                if g == 2 and ks == 1: v += self.flag_store(2)
                if g == 4 and ks == 1: v += self.poll_issue('h1', s_fl, 512)
                if g == 6 and ks == 0: v += self.poll_check('h1', s_fl, 512) + self.ldH(1, 0) + self.ldH(1, 1)
                if g == 6 and ks == 1: v += self.ldH(1, 2) + self.ldH(1, 3)
            else:
                if ks == 0 and g <= 2: v += self.ldH(1, g + 4)
                if g == 1 and ks == 1: v += self.poll_issue('h2', s_fl, 1024)
                if g == 3 and ks == 0: v += self.poll_check('h2', s_fl, 1024)
                if ks == 0 and g >= 3: v += self.ldH(2, g - 3)
                if g == 6 and ks == 1: v += tail_setup
            streams = [q for q in (f, v) if q]
            weave(e, self.mf2(th, g, ks), merge(*streams) if streams else [])
        run(self.stamp())
        run(self.W(vm=('c', 6)))
        for g in range(7):
            for ks in range(2):
                run(self.W(vm=('h', 2, g)))
                v = []
                if ks == 0 and g <= 2: v += self.ldH(2, g + 4)
                if g == 3 and ks == 0: v += self.tail_prep()
                weave(e, self.mf2(2, g, ks), v)
        run(self.stamp())
        self.tail()

    def tail_setup(self):
        f = T(f'''v_and_b32 v6, 3, v1
                  v_bfe_u32 v7, v1, 2, 1
                  v_lshl_add_u32 v6, v7, 5, v6
                  v_bfe_u32 v7, v1, 3, 2
                  v_lshl_add_u32 v6, v7, 2, v6
                  v_lshlrev_b32 v10, 3, v6
                  s_lshl_b32 {s_so}, {s_tt}, 9
                  s_add_u32 {s_so}, {s_so}, {OFF_G}''')
        f.append(lambda e: e.vm('g', f'buffer_load_dwordx2 v[2:3], v10, {sS}, {s_so} offen sc1'))
        f.append(lambda e: e.vm('g', f'buffer_load_dwordx2 v[4:5], v10, {sS}, {s_so} offen offset:128 sc1'))
        f += T(f'''v_lshrrev_b32 v6, 4, v1
                  v_and_b32 v7, 15, v1
                  v_mul_u32_u24 v8, 896, v6
                  v_lshl_add_u32 v8, v7, 3, v8
                  v_lshlrev_b32 v11, 1, v8
                  s_lshl_b32 {s_t0}, {s_tt}, 3
                  s_add_u32 {s_t0}, {s_t0}, {s_w}
                  s_mul_i32 {s_t0}, {s_t0}, 7168
                  s_lshl_b32 {s_t1}, {s_ct}, 7
                  s_add_u32 {s_xo}, {s_t0}, {s_t1}
                  s_add_u32 {s_x1}, {s_xo}, 28672
                  v_lshl_add_u32 v9, v7, 3, {s_t1}''')
        for j in range(4):
            f.append(lambda e, j=j: e.vm('xs', f'buffer_load_dwordx2 {vr(224+2*j,2)}, v8, {sX}, {(s_xo, s_x1)[j&1]} offen offset:{3584*(j>>1)}'))
        f.append(lambda e: e.vm('xs', f'global_load_dwordx2 v[232:233], v9, s[20:21]'))
        return f
    def tail_prep(self):
        chk = f'''v_xor_b32 v3, v{vTag}, v3
                  v_xor_b32 v5, v{vTag}, v5
                  v_or_b32 v3, v3, v5
                  v_cmp_ne_u32 vcc, 0, v3
                  s_nop 1
               '''
        self.slow.append(f'''L_slow_g:
    s_mov_b32 {s_spin}, {SPIN}
L_spin_g:
    s_sleep 1
    buffer_load_dwordx2 v[2:3], v10, {sS}, {s_so} offen sc1
    buffer_load_dwordx2 v[4:5], v10, {sS}, {s_so} offen offset:128 sc1
    s_sub_u32 {s_spin}, {s_spin}, 1
    s_waitcnt vmcnt(0)
    s_cbranch_scc1 L_back_g
''' + '\n'.join('    ' + x.strip() for x in chk.split('\n') if x.strip()) + '''
    s_cbranch_vccnz L_spin_g
    s_branch L_back_g
''')
        def c(e):
            e.wait(vm='xs'); e(chk); e('s_cbranch_vccnz L_slow_g\nL_back_g:')
        f = [c]
        f += [lambda e: e(f's_cmp_ge_u32 {s_w}, 2\ns_cselect_b64 vcc, -1, 0\nv_cndmask_b32 v3, v2, v4, vcc')]
        f += T(f'''s_and_b32 {s_t0}, {s_w}, 1
                   s_lshl_b32 {s_t0}, {s_t0}, 6
                   v_lshl_add_u32 v5, v6, 2, {s_t0}''')
        for j in range(4):
            f.append(lambda e, j=j: e.ds('gb', f'ds_bpermute_b32 v{12+j}, v5, v3 offset:{16*j}'))
        f += T(f'''v_lshlrev_b32 v16, 16, v232
                   v_and_b32 v17, 0xffff0000, v232
                   v_lshlrev_b32 v18, 16, v233
                   v_and_b32 v19, 0xffff0000, v233''')
        for j in range(4):
            f += T(f'''v_lshlrev_b32 v{236+4*j}, 16, v{224+2*j}
                       v_and_b32 v{237+4*j}, 0xffff0000, v{224+2*j}
                       v_lshlrev_b32 v{238+4*j}, 16, v{225+2*j}
                       v_and_b32 v{239+4*j}, 0xffff0000, v{225+2*j}''')
            for q in range(4): f += T(f'v_mul_f32 v{236+4*j+q}, v{236+4*j+q}, v{16+q}')
        f += self.W(ds='gb')
        for j in range(4):
            for q in range(4): f += T(f'v_mul_f32 v{236+4*j+q}, v{236+4*j+q}, v{12+j}')
        f += T(f'''v_lshrrev_b32 v12, 5, v1
                   v_and_b32 v13, 7, v1
                   v_xor_b32 v12, v12, v13
                   v_lshlrev_b32 v12, 4, v12
                   v_lshl_add_u32 v12, v7, 8, v12
                   v_bfe_u32 v13, v1, 4, 1
                   v_lshl_add_u32 v12, v13, 14, v12
                   v_add_u32 v26, {s_wq}, v12
                   v_xor_b32 v27, 32, v26
                   v_xor_b32 v28, 64, v26
                   v_xor_b32 v29, 0x60, v26
                   v_xor_b32 v12, v7, v6
                   v_lshlrev_b32 v12, 4, v12
                   v_lshl_add_u32 v12, v6, 8, v12
                   s_lshl_b32 {s_t0}, {s_w}, 14
                   v_add_u32 v24, {s_t0}, v12
                   v_xor_b32 v25, 64, v24
                   s_lshl_b32 {s_xo}, {s_xo}, 1
                   s_lshl_b32 {s_x1}, {s_x1}, 1
                   s_add_u32 {s_t1}, {s_xo}, 7168
                   s_add_u32 {s_t2}, {s_x1}, 7168
                   v_sub_f32 v30, 1.0, v2
                   v_sub_f32 v31, 1.0, v4''')
        for t in range(4):
            for r in range(16): f += T(f'v_mul_f32 v{SET0+16*t+r}, v{30+(t&1)}, v{SET0+16*t+r}')
        return f
    def tail(self):
        e = self.e
        for t in range(4):
            nb, b = t >> 1, t & 1
            for q in range(4):
                for r in range(4 * q, 4 * q + 4): e(f'v_fmac_f32 v{SET0+16*t+r}, v{2+2*b}, v{SET1+16*t+r}')
                e.ds('rw', f'ds_write_b128 v{26+q}, {vr(SET0+16*t+4*q)} offset:{128*nb+32768*b}')
        e.wait(ds='rw'); e('s_barrier')
        for j in range(4):
            for src in range(4):
                e.ds(('rr', j), f'ds_read_b128 {vr(SET1+16*j+4*src)}, v{24+(j&1)} offset:{4096*src+1024*j}')
        for j in range(4):
            e.wait(ds=('rr', j))
            a = SET1 + 16 * j
            for q in range(4):
                e(f'v_add_f32 v{a+q}, v{a+q}, v{a+4+q}\nv_add_f32 v{a+8+q}, v{a+8+q}, v{a+12+q}')
            for q in range(4):
                e(f'v_add_f32 v{a+q}, v{a+q}, v{236+4*j+q}')
            for q in range(4):
                e(f'v_add_f32 v{a+q}, v{a+q}, v{a+8+q}')
            e(f'buffer_store_dwordx4 {vr(a)}, v11, {sO}, {(s_xo, s_x1, s_t1, s_t2)[j]} offen')
        if self.stamps: self.dump_stamps()
        e('s_endpgm')

    def dump_stamps(self):
        e = self.e
        e(f'''s_waitcnt vmcnt(0)
            v_mov_b32 v2, s98
            v_mov_b32 v4, s100
            s_memrealtime s[98:99]
            s_memtime s[100:101]
            s_getreg_b32 {s_t0}, hwreg(HW_REG_XCC_ID)
            s_waitcnt lgkmcnt(0)
            v_mov_b32 v3, s98
            v_mov_b32 v5, s100
            v_mov_b32 v6, {s_t0}
            v_mov_b32 v7, 0
            v_mov_b32 v8, s90
            v_mov_b32 v9, s92
            v_mov_b32 v12, s94
            v_mov_b32 v13, s96
            v_mov_b32 v14, s4
            v_mov_b32 v15, s6
            s_lshl_b32 {s_t0}, s2, 2
            s_add_u32 {s_t0}, {s_t0}, s3
            s_lshl_b32 {s_t0}, {s_t0}, 6
            s_add_u32 {s_t0}, {s_t0}, {OFF_ST}
            v_min_u32 v10, 1, v1
            v_lshlrev_b32 v10, 31, v10
            buffer_store_dwordx4 v[2:5], v10, {sS}, {s_t0} offen
            buffer_store_dwordx4 v[6:9], v10, {sS}, {s_t0} offen offset:16
            buffer_store_dwordx4 v[12:15], v10, {sS}, {s_t0} offen offset:32''')

    def spare(self, code_kb):
        e = Emit(); self.e = e
        e(f'''L_spare:
            s_getpc_b64 s[64:65]
L_pc:
            s_sub_u32 s64, s64, L_pc-{KN}_kernel
            s_subb_u32 s65, s65, 0
            v_lshlrev_b32 v2, 4, v0''')
        for i in range((code_kb + 3) // 4):
            e(f'global_load_dwordx4 v[200:203], v2, s[64:65]\ns_add_u32 s64, s64, 4096\ns_addc_u32 s65, s65, 0')
        e(f'''s_sub_u32 s66, s2, 224
            v_mov_b32 v3, 0
            s_waitcnt lgkmcnt(0)
            s_mov_b32 s56, s36
            s_mov_b32 s57, s37
            s_mov_b32 s40, s4
            s_mov_b32 s41, s5''')
        e.vm('e', f'buffer_load_dword v{vTag}, v3, {sS}, 0 offen sc1')
        e(f'''s_cmp_ge_u32 s66, 28
            s_cbranch_scc1 L_sp_gate
            s_lshr_b32 s67, s66, 2
            s_and_b32 s68, s66, 3
            s_and_b32 s69, s3, 1
            s_lshl_b32 s70, s67, 1
            s_add_u32 s70, s70, s69
            s_mul_i32 s70, s70, 28672
            s_mul_i32 s71, s68, 224
            s_add_u32 s70, s70, s71
            s_cmp_ge_u32 s3, 2
            s_cselect_b32 s44, s16, s14
            s_cselect_b32 s45, s17, s15
            s_mov_b32 s46, 401408
            s_mov_b32 s47, 0x20000
            v_and_b32 v4, 31, v1
            v_mul_u32_u24 v4, 896, v4
            v_lshrrev_b32 v5, 5, v1
            v_lshl_add_u32 v8, v5, 4, v4''')
        for g in range(7):
            e.vm(('c', g), f'buffer_load_dwordx4 {vr(64+4*g)}, v8, {sB}, s70 offen offset:{32*g}')
        e(f'''s_mul_i32 s71, s66, {7*4096}
            s_lshl_b32 s72, s3, 10
            s_add_u32 s71, s71, s72
            s_add_u32 s71, s71, {OFF_CP}''')
        for g in range(7):
            e.wait(vm=('c', g))
            e.vm('cs', f'buffer_store_dwordx4 {vr(64+4*g)}, v{vL16}, {sS}, s71 offen sc1')
            e('s_add_u32 s71, s71, 4096')
        e(f'''s_mov_b32 s72, {LCG_A}
            v_mul_lo_u32 v9, v{vTag}, s72
            v_add_u32 v9, {LCG_C}, v9
            v_lshrrev_b32 v4, 1, v1
            v_min_u32 v4, 1, v4
            v_lshlrev_b32 v4, 31, v4
            v_lshl_or_b32 v4, v1, 4, v4
            s_lshl_b32 s71, s66, 7
            s_lshl_b32 s72, s3, 2
            s_add_u32 s71, s71, s72
            s_add_u32 s71, s71, {OFF_FC}
            s_waitcnt vmcnt(0)
            buffer_store_dword v9, v4, {sS}, s71 offen sc1
L_sp_gate:
            v_and_b32 v4, 15, v1
            v_lshrrev_b32 v5, 4, v1
            v_mul_u32_u24 v5, 224, v5
            v_mul_u32_u24 v6, 896, v4
            v_add_u32 v6, v6, v5
            s_lshl_b32 s70, s66, 2
            s_add_u32 s70, s70, s3
            s_mul_i32 s71, s70, 14336''')
        for c in range(14):
            e(f'buffer_load_dwordx4 {vr(64+4*c)}, v6, {sX}, s71 offen offset:{16*c}')
            e(f'global_load_dwordx4 {vr(128+4*c)}, v5, s[30:31] offset:{16*c}')
        e(f'''v_mov_b32 v10, 0
            v_mov_b32 v11, 0
            s_mov_b32 s72, {LCG_A}
            s_waitcnt vmcnt(0)
            v_mul_lo_u32 v{vTag}, v{vTag}, s72
            v_add_u32 v{vTag}, {LCG_C}, v{vTag}
            s_barrier''')
        for r in range(56):
            e(f'v_dot2c_f32_bf16 v{10+(r&1)}, v{64+r}, v{128+r}')
        e(f'''v_add_f32 v10, v10, v11
            v_mov_b32 v11, v10
            v_permlane32_swap_b32 v10, v11
            v_add_f32 v10, v10, v11
            v_mov_b32 v11, v10
            v_permlane16_swap_b32 v10, v11
            v_add_f32 v10, v10, v11
            v_mul_f32 v10, 0xbfb8aa3b, v10
            v_exp_f32 v10, v10
            v_add_f32 v10, 1.0, v10
            v_rcp_f32 v{vSt}, v10
            v_lshrrev_b32 v5, 4, v1
            v_min_u32 v5, 1, v5
            v_lshlrev_b32 v5, 31, v5
            v_lshl_or_b32 v5, v4, 3, v5
            s_lshl_b32 s71, s70, 7
            s_add_u32 s71, s71, {OFF_G}
            buffer_store_dwordx2 {vr(vSt,2)}, v5, {sS}, s71 offen sc1
            s_cmp_eq_u32 s66, 31
            s_cbranch_scc0 L_end''')
        e(f'''v_lshlrev_b32 v4, 8, v0
            v_add_u32 v4, {OFF_S+4}, v4
            v_lshlrev_b32 v5, 9, v0
            v_add_u32 v5, {OFF_G+4-224*512}, v5
            v_cmp_le_u32 vcc, 224, v0
            v_cndmask_b32 v4, v4, v5, vcc
            s_mov_b32 s72, {SPIN}
L_keep:
            s_sleep 8
            buffer_load_dword v5, v4, {sS}, 0 offen sc1
            s_sub_u32 s72, s72, 1
            s_waitcnt vmcnt(0)
            s_cbranch_scc1 L_keep_done
            v_cmp_ne_u32 vcc, v5, v{vTag}
            s_nop 1
            s_cbranch_vccnz L_keep
L_keep_done:
            s_barrier
            v_min_u32 v4, 1, v0
            v_lshlrev_b32 v4, 31, v4
            buffer_store_dword v{vTag}, v4, {sS}, 0 offen sc1
L_end:
            s_endpgm''')
        return e.text()

    def build(self):
        self.prologue(); self.main()
        body = self.e.text(); nops = self.e.nops
        body += ''.join(self.slow)
        body += self.spare(code_kb=20)
        hdr = open('cdna_kernels/' + KN + '.s.ref').read().split('; Override launch')[0]
        return hdr + f"""; @launch grid=(256,1,1) block=(256,1,1) lds=163840
.amdgcn_target "amdgcn-amd-amdhsa--gfx950"
.text
.globl {KN}_kernel
.p2align 8
.type {KN}_kernel,@function
{KN}_kernel:
{body}
.p2align 8
.fill 1024, 4, 0xbf800000
.section .rodata,"a"
.p2align 6
.amdhsa_kernel {KN}_kernel
  .amdhsa_next_free_vgpr 512
  .amdhsa_next_free_sgpr 102
  .amdhsa_accum_offset 256
  .amdhsa_group_segment_fixed_size 0
  .amdhsa_kernarg_size 136
  .amdhsa_user_sgpr_count 2
  .amdhsa_user_sgpr_kernarg_segment_ptr 1
  .amdhsa_system_sgpr_workgroup_id_x 1
.end_amdhsa_kernel
""", nops

if __name__ == '__main__':
    import argparse
    ap = argparse.ArgumentParser(); ap.add_argument('out'); ap.add_argument('--stamps', action='store_true'); ap.add_argument('--rot', action='store_true')
    a = ap.parse_args()
    txt, nops = Gen(stamps=a.stamps, rot=a.rot).build()
    open(a.out, 'w').write(txt); print('nops inserted', nops)
```
